```python
import torch

def _softmax(x, axis=-1):
    return torch.softmax(x, dim=axis)
def _gelu(x):
    return torch.nn.functional.gelu(x, approximate="tanh")
def _silu(x):
    return torch.nn.functional.silu(x)
def _sigmoid(x):
    return torch.sigmoid(x)
def _layernorm(x, axis=-1, eps=1e-5):
    m = x.mean(dim=axis, keepdim=True)
    v = x.var(dim=axis, keepdim=True, unbiased=False)
    return (x - m) / torch.sqrt(v + eps)
def _scatter_add(tgt, idx, src, axis=0):
    return tgt.clone().index_add_(axis, idx, src)
def _segment_sum(src, seg, n):
    out = torch.zeros((n,) + src.shape[1:], dtype=src.dtype)
    return out.index_add_(0, seg, src)
def _pad(x, pw):
    flat = tuple(v for pair in reversed(pw) for v in pair)
    return torch.nn.functional.pad(x, flat)

kernel_name = 'interleave_layers__linear_kernel_hedgehog__spectral_fnet__prompt'

def setup_inputs():

    _w = (lambda a: (lambda t: t.to(torch.bfloat16) if t.is_floating_point() else t)(torch.as_tensor(a)))
    def _A_setup():
        B, S, D, H = 1, 2048, 576, 32
        Dh = D // H
        return {
            "x": _w((lambda *s: torch.randn(*s, dtype=torch.bfloat16) * 0.4)(B, S, D)),
            "wqkv": _w((lambda *s: torch.randn(*s, dtype=torch.bfloat16) * 1.6)(D, 3 * D)),
            "w_phi": _w((lambda *s: torch.randn(*s, dtype=torch.bfloat16) * 1.6)(H, Dh, Dh) * (Dh ** -0.5)),
            "wo": _w((lambda *s: torch.randn(*s, dtype=torch.bfloat16) * 1.6)(D, D)),
        }
    _A_in = _A_setup()

    def _B_setup():
        B, S, D = 1, 2048, 576
        ns = torch.arange(S)[:, None] * torch.arange(S)[None, :]
        nd = torch.arange(D)[:, None] * torch.arange(D)[None, :]
        Ws_re = torch.cos(-2.0 * torch.pi * ns / S).to(float)
        Ws_im = torch.sin(-2.0 * torch.pi * ns / S).to(float)
        Wd_re = torch.cos(-2.0 * torch.pi * nd / D).to(float)
        Wd_im = torch.sin(-2.0 * torch.pi * nd / D).to(float)
        return {
            "x": _w((lambda *s: torch.randn(*s, dtype=torch.bfloat16) * 0.4)(B, S, D)),
            "dft_seq_re": _w(Ws_re),
            "dft_seq_im": _w(Ws_im),
            "dft_hid_re": _w(Wd_re),
            "dft_hid_im": _w(Wd_im),
        }
    _B_in = _B_setup()

    return {
        "A_x": _A_in["x"],
        "A_wqkv": _A_in["wqkv"],
        "A_w_phi": _A_in["w_phi"],
        "A_wo": _A_in["wo"],
        "B_x": _B_in["x"],
        "B_dft_seq_re": _B_in["dft_seq_re"],
        "B_dft_seq_im": _B_in["dft_seq_im"],
        "B_dft_hid_re": _B_in["dft_hid_re"],
        "B_dft_hid_im": _B_in["dft_hid_im"],
    }

def reference(A_x, A_wqkv, A_w_phi, A_wo, B_x, B_dft_seq_re, B_dft_seq_im, B_dft_hid_re, B_dft_hid_im):
    def _A_ref(x, wqkv, w_phi, wo):
        B, S, D = x.shape
        H = 32; Dh = D // H
        qkv = (lambda x, *d: x.permute(*d))((x @ wqkv).reshape(B, S, 3, H, Dh), 2, 0, 3, 1, 4)
        q, k, v = qkv[0], qkv[1], qkv[2]
        pq = torch.einsum("bhsd,hdf->bhsf", q, w_phi)
        pk = torch.einsum("bhsd,hdf->bhsf", k, w_phi)
        phi_q = torch.concatenate([_softmax(pq, axis=-1), _softmax(-pq, axis=-1)], axis=-1)
        phi_k = torch.concatenate([_softmax(pk, axis=-1), _softmax(-pk, axis=-1)], axis=-1)
        kv = torch.einsum("bhsf,bhsd->bhfd", phi_k, v)
        z  = torch.einsum("bhsf->bhf", phi_k)
        num = torch.einsum("bhqf,bhfd->bhqd", phi_q, kv)
        den = torch.einsum("bhqf,bhf->bhq", phi_q, z)[..., None] + 1e-6
        o = num / den
        return (lambda x, *d: x.permute(*d))(o, 0, 2, 1, 3).reshape(B, S, D) @ wo

    def _B_ref(x, dft_seq_re, dft_seq_im, dft_hid_re, dft_hid_im):
        a = torch.einsum("bsd,ed->bse", x, dft_hid_re)
        b = torch.einsum("bsd,ed->bse", x, dft_hid_im)
        y = torch.einsum("ts,bse->bte", dft_seq_re, a) - torch.einsum("ts,bse->bte", dft_seq_im, b)
        return y

    x = A_x
    x = x + _A_ref(_layernorm(x, axis=-1), A_wqkv, A_w_phi, A_wo)
    x = x + _B_ref(_layernorm(x, axis=-1), B_dft_seq_re, B_dft_seq_im, B_dft_hid_re, B_dft_hid_im)
    x = x + _A_ref(_layernorm(x, axis=-1), A_wqkv, A_w_phi, A_wo)
    x = x + _B_ref(_layernorm(x, axis=-1), B_dft_seq_re, B_dft_seq_im, B_dft_hid_re, B_dft_hid_im)
    return x
```

```python
from g import *
LOG2E = 0x3fb8aa3b
PITCH = 144
WREG = 80 * PITCH
WOFF_KV = 4 * WREG

def bc(r):
    if r % 2 == 0: return f"v[{r}:{r+1}]", 0, 0
    return f"v[{r-1}:{r}]", 1, 1

def pkfma(dst, a, r, c=None):
    p, lo, hi = bc(r)
    return f"v_pk_fma_f32 v[{dst}:{dst+1}], v[{a}:{a+1}], {p}, v[{dst}:{dst+1}] op_sel:[0,{lo},0] op_sel_hi:[1,{hi},1]"

def pkmul(dst, r):
    p, lo, hi = bc(r)
    return f"v_pk_mul_f32 v[{dst}:{dst+1}], v[{dst}:{dst+1}], {p} op_sel:[0,{lo}] op_sel_hi:[1,{hi}]"

def load_head(k, dst9, voff, srd_s, soff_s):
    k(f"buffer_load_dwordx4 v[{dst9}:{dst9+3}], v{voff}, s[{srd_s}:{srd_s+3}], s{soff_s} offen")
    k(f"buffer_load_dwordx4 v[{dst9+4}:{dst9+7}], v{voff}, s[{srd_s}:{srd_s+3}], s{soff_s} offen offset:16")
    k(f"buffer_load_dword v{dst9+8}, v{voff}, s[{srd_s}:{srd_s+3}], s{soff_s} offen offset:32")

def unpack18(k, src9, dst18):
    for i in range(9):
        k(f"v_lshlrev_b32 v{dst18+2*i}, 16, v{src9+i}\nv_and_b32 v{dst18+2*i+1}, 0xffff0000, v{src9+i}")

def load_wtable(k, head_s, woff, vt):
    k(f"s_mul_i32 s28, s{head_s}, 648")
    for i in range(2):
        if i == 1: k(f"v_cmp_gt_u32 vcc, 68, v0\ns_and_saveexec_b64 s[32:33], vcc")
        k(f"v_lshlrev_b32 v{vt}, 1, v0\nbuffer_load_ushort v{vt+1+i}, v{vt}, s[16:19], s28 offen offset:{512*i}")
        if i == 1: k("s_mov_b64 exec, s[32:33]")
    k("s_waitcnt vmcnt(0)")
    for i in range(2):
        if i == 1: k(f"v_cmp_gt_u32 vcc, 68, v0\ns_and_saveexec_b64 s[32:33], vcc")
        k(f"v_lshlrev_b32 v{vt+1+i}, 16, v{vt+1+i}\nv_lshlrev_b32 v{vt}, 2, v0\nds_write_b32 v{vt}, v{vt+1+i} offset:{woff + 1024*i}")
        if i == 1: k("s_mov_b64 exec, s[32:33]")

def phi_from(k, xf, pacc, tmp9, ep, em, woff, vz, ring):
    for f in range(18): k(f"v_mov_b32 v{pacc+f}, 0")
    ng = 81
    def rdg(g): k(f"ds_read_b128 v[{ring+4*(g%4)}:{ring+4*(g%4)+3}], v{vz} offset:{woff + 16*g}")
    rdg(0); rdg(1); rdg(2)
    for g in range(ng):
        if g + 3 < ng: rdg(g + 3)
        k(f"s_waitcnt lgkmcnt({min(3, ng - 1 - g)})")
        for h in range(2):
            e = 4 * g + 2 * h
            d, f = e // 18, e % 18
            w = ring + 4 * (g % 4) + 2 * h
            k(pkfma(pacc + f, w, xf + d))
    for i in range(9):
        k(f"v_cvt_pk_bf16_f32 v{tmp9+i}, v{pacc+2*i}, v{pacc+2*i+1}")
    for i in range(9):
        k(f"v_lshlrev_b32 v{pacc+2*i}, 16, v{tmp9+i}\nv_and_b32 v{pacc+2*i+1}, 0xffff0000, v{tmp9+i}")
    mx, mn = tmp9, tmp9 + 1
    k(f"v_max3_f32 v{mx}, v{pacc}, v{pacc+1}, v{pacc+2}\nv_min3_f32 v{mn}, v{pacc}, v{pacc+1}, v{pacc+2}")
    for i in range(3, 17, 2):
        k(f"v_max3_f32 v{mx}, v{mx}, v{pacc+i}, v{pacc+i+1}\nv_min3_f32 v{mn}, v{mn}, v{pacc+i}, v{pacc+i+1}")
    k(f"v_max_f32 v{mx}, v{mx}, v{pacc+17}\nv_min_f32 v{mn}, v{mn}, v{pacc+17}")
    k(f"s_mov_b32 s34, 0x{LOG2E:x}\nv_mul_f32 v{mx}, s34, v{mx}\nv_mul_f32 v{mn}, s34, v{mn}")
    for f in range(18):
        k(f"v_fma_f32 v{ep+f}, v{pacc+f}, s34, -v{mx}\nv_fma_f32 v{em+f}, -v{pacc+f}, s34, v{mn}")
    for f in range(18):
        k(f"v_exp_f32 v{ep+f}, v{ep+f}\nv_exp_f32 v{em+f}, v{em+f}")
    sp, sm = tmp9 + 2, tmp9 + 3
    k(f"s_nop 0\nv_add_f32 v{sp}, v{ep}, v{ep+1}\nv_add_f32 v{sm}, v{em}, v{em+1}")
    for f in range(2, 18):
        k(f"v_add_f32 v{sp}, v{sp}, v{ep+f}\nv_add_f32 v{sm}, v{sm}, v{em+f}")
    k(f"v_rcp_f32 v{sp}, v{sp}\nv_rcp_f32 v{sm}, v{sm}\ns_nop 0")
    for f in range(0, 18, 2):
        k(pkmul(ep + f, sp)); k(pkmul(em + f, sm))

def gen_kv(stop=0):
    k = K("kv_kernel", nvgpr=144, lds=4 * WREG + 1312)
    k.grid = 32 * KVCH
    k(f"s_cmp_ge_u32 s2, {k.grid}\ns_cbranch_scc1 kv_kernel_end")
    k("s_load_dwordx2 s[4:5], s[0:1], 88\ns_load_dwordx2 s[6:7], s[0:1], 16\nv_and_b32 v1, 63, v0\nv_lshrrev_b32 v2, 6, v0\ns_nop 0\nv_readfirstlane_b32 s24, v2")
    k("s_and_b32 s26, s2, 31\ns_lshr_b32 s27, s2, 5\ns_waitcnt lgkmcnt(0)")
    srd(k, 8, 4, WS["QKV"], S * N3 * 2)
    srd(k, 12, 4, WS["KVP"], 32 * KVCH * KVP_PITCH)
    srd(k, 16, 6, 0, 32 * 324 * 2)
    k(f"s_lshl_b32 s28, s27, 8\ns_lshl_b32 s29, s24, 6\ns_add_u32 s28, s28, s29\nv_add_u32 v3, s28, v1\ns_mov_b32 s29, {N3*2}\nv_mul_lo_u32 v3, v3, s29")
    k(f"s_mul_i32 s30, s26, 36\ns_add_u32 s31, s30, {D*2}\ns_add_u32 s30, s30, {2*D*2}")
    load_head(k, 8, 3, 8, 31); load_head(k, 20, 3, 8, 30)
    load_wtable(k, 26, WOFF_KV, 4)
    k("v_mov_b32 v7, 0\ns_waitcnt lgkmcnt(0)\ns_barrier")
    if stop == 1:
        k.label("kv_kernel_end"); return k
    unpack18(k, 8, 32)
    phi_from(k, 32, 52, 8, 72, 92, WOFF_KV, 7, 124)
    if stop == 2:
        k.label("kv_kernel_end"); return k
    for i in range(9):
        k(f"v_cvt_pk_bf16_f32 v{32+i}, v{72+2*i}, v{72+2*i+1}\nv_cvt_pk_bf16_f32 v{41+i}, v{92+2*i}, v{92+2*i+1}")
    k(f"s_mul_i32 s28, s24, {WREG}\nv_lshlrev_b32 v4, 1, v1\nv_add_u32 v4, s28, v4")
    for i in range(18):
        k(f"ds_write_b16 v4, v{32+i} offset:{(2*i)*PITCH}\nds_write_b16_d16_hi v4, v{32+i} offset:{(2*i+1)*PITCH}")
    for i in range(9):
        k(f"ds_write_b16 v4, v{20+i} offset:{(48+2*i)*PITCH}\nds_write_b16_d16_hi v4, v{20+i} offset:{(48+2*i+1)*PITCH}")
    k(f"v_mov_b32 v5, 0x3f80\nds_write_b16 v4, v5 offset:{66*PITCH}")
    k(f"v_and_b32 v5, 15, v1\ns_mov_b32 s29, {PITCH}\nv_mul_lo_u32 v5, v5, s29\nv_lshrrev_b32 v6, 4, v1\nv_lshl_add_u32 v5, v6, 4, v5\nv_add_u32 v5, s28, v5")
    for i in range(24): k(f"v_mov_b32 v{100+i}, 0")
    k("s_waitcnt lgkmcnt(0)")
    for ks in range(2):
        for mb in range(3): k(f"ds_read_b128 v[{52+4*mb}:{55+4*mb}], v5 offset:{mb*16*PITCH + ks*64}")
        for nb in range(2): k(f"ds_read_b128 v[{64+4*nb}:{67+4*nb}], v5 offset:{(48+nb*16)*PITCH + ks*64}")
        k("s_waitcnt lgkmcnt(0)")
        for mb in range(3):
            for nb in range(2):
                a = 100 + 4 * (mb * 2 + nb)
                k(f"v_mfma_f32_16x16x32_bf16 v[{a}:{a+3}], v[{52+4*mb}:{55+4*mb}], v[{64+4*nb}:{67+4*nb}], v[{a}:{a+3}]")
    k("s_nop 7\ns_nop 7")
    if stop == 3:
        k.label("kv_kernel_end"); return k
    k("v_lshlrev_b32 v6, 2, v1\nv_add_u32 v6, s28, v6")
    for r in range(24): k(f"ds_write_b32 v6, v{100+r} offset:{r*256}")
    k("s_waitcnt lgkmcnt(0)\ns_barrier")
    k("v_lshlrev_b32 v6, 2, v1\ns_lshl_b32 s29, s24, 8\nv_add_u32 v6, s29, v6")
    for i in range(6):
        for w in range(4):
            k(f"ds_read_b32 v{52+4*i+w}, v6 offset:{w*WREG + i*1024}")
    k("s_waitcnt lgkmcnt(0)")
    k(f"v_lshrrev_b32 v7, 4, v1\nv_lshlrev_b32 v7, 2, v7\nv_add_u32 v7, s24, v7")
    k("v_and_b32 v8, 15, v1")
    k(f"s_mul_i32 s28, s2, {KVP_PITCH}")
    for i in range(6):
        mb, nb = i // 2, i % 2
        k(f"v_add_f32 v{52+4*i}, v{52+4*i}, v{53+4*i}\nv_add_f32 v{54+4*i}, v{54+4*i}, v{55+4*i}\nv_add_f32 v{52+4*i}, v{52+4*i}, v{54+4*i}")
        k(f"v_add_u32 v9, {16*mb}, v7\nv_add_u32 v10, {16*nb}, v8\nv_cmp_gt_u32 vcc, 36, v9\nv_cmp_gt_u32 s[30:31], 19, v10\ns_and_b64 vcc, vcc, s[30:31]")
        k(f"s_mov_b32 s29, 80\nv_mul_lo_u32 v9, v9, s29\nv_lshl_add_u32 v9, v10, 2, v9")
        k(f"s_and_saveexec_b64 s[30:31], vcc\nbuffer_store_dword v{52+4*i}, v9, s[12:15], s28 offen\ns_mov_b64 exec, s[30:31]")
    k.label("kv_kernel_end")
    return k

def gen_o():
    WOFF = 2880
    k = K("o_kernel", nvgpr=176, lds=WOFF + 1312)
    k.grid = 32 * KVCH
    k(f"s_cmp_ge_u32 s2, {k.grid}\ns_cbranch_scc1 o_kernel_end")
    k("s_load_dwordx2 s[4:5], s[0:1], 88\ns_load_dwordx2 s[6:7], s[0:1], 16\nv_and_b32 v1, 63, v0\nv_lshrrev_b32 v2, 6, v0\ns_nop 0\nv_readfirstlane_b32 s24, v2")
    k("s_and_b32 s26, s2, 31\ns_lshr_b32 s27, s2, 5\ns_waitcnt lgkmcnt(0)")
    srd(k, 8, 4, WS["QKV"], S * N3 * 2)
    srd(k, 12, 4, WS["KVP"], 32 * KVCH * KVP_PITCH)
    srd(k, 16, 6, 0, 32 * 324 * 2)
    srd(k, 20, 4, WS["O"], S * ROWB)
    k(f"s_lshl_b32 s28, s27, 8\ns_lshl_b32 s29, s24, 6\ns_add_u32 s28, s28, s29\nv_add_u32 v3, s28, v1\ns_mov_b32 s29, {N3*2}\nv_mul_lo_u32 v4, v3, s29")
    k(f"s_mul_i32 s30, s26, 36")
    load_head(k, 8, 4, 8, 30)
    k(f"v_lshlrev_b32 v5, 2, v0")
    for i in range(3):
        for c in range(KVCH):
            if i == 2:
                if c == 0: k("v_cmp_gt_u32 vcc, 208, v0\ns_and_saveexec_b64 s[32:33], vcc")
            k(f"s_add_u32 s28, s26, {32*c}\ns_mul_i32 s28, s28, {KVP_PITCH}\nbuffer_load_dword v{20+8*i+c}, v5, s[12:15], s28 offen offset:{1024*i}")
        if i == 2: k("s_mov_b64 exec, s[32:33]")
    load_wtable(k, 26, WOFF, 44)
    for i in range(3):
        b = 20 + 8 * i
        for c in range(1, KVCH): k(f"v_add_f32 v{b}, v{b}, v{b+c}")
        k(f"v_cvt_pk_bf16_f32 v{b}, v{b}, v{b}\nv_lshlrev_b32 v{b}, 16, v{b}")
        if i == 2: k("v_cmp_gt_u32 vcc, 208, v0\ns_and_saveexec_b64 s[32:33], vcc")
        k(f"ds_write_b32 v5, v{b} offset:{1024*i}")
        if i == 2: k("s_mov_b64 exec, s[32:33]")
    k("v_mov_b32 v6, 0\ns_waitcnt lgkmcnt(0)\ns_barrier")
    unpack18(k, 8, 32)
    phi_from(k, 32, 52, 8, 72, 92, WOFF, 6, 112)
    for base in (72, 92):
        for i in range(9):
            k(f"v_cvt_pk_bf16_f32 v8, v{base+2*i}, v{base+2*i+1}\nv_lshlrev_b32 v{base+2*i}, 16, v8\nv_and_b32 v{base+2*i+1}, 0xffff0000, v8")
    for d in range(20): k(f"v_mov_b32 v{32+d}, 0")
    rb = (112, 132, 152)
    def rdrow(f, b):
        for j in range(5): k(f"ds_read_b128 v[{b+4*j}:{b+4*j+3}], v6 offset:{f*80 + 16*j}")
    rdrow(0, rb[0]); rdrow(1, rb[1])
    for f in range(36):
        b = rb[f % 3]
        if f + 2 < 36:
            rdrow(f + 2, rb[(f + 2) % 3]); k("s_waitcnt lgkmcnt(10)")
        elif f + 1 < 36: k("s_waitcnt lgkmcnt(5)")
        else: k("s_waitcnt lgkmcnt(0)")
        ph = (72 + f) if f < 18 else (92 + f - 18)
        for d in range(0, 20, 2):
            k(pkfma(32 + d, b + d, ph))
    k("v_cvt_pk_bf16_f32 v8, v50, v50\nv_lshlrev_b32 v50, 16, v8\nv_add_f32 v50, 0x358637bd, v50\nv_cvt_pk_bf16_f32 v8, v50, v50\nv_lshlrev_b32 v50, 16, v8")
    k("v_rcp_f32 v51, v50\ns_nop 0")
    for i in range(9):
        a, b = 32 + 2 * i, 33 + 2 * i
        k(f"v_cvt_pk_bf16_f32 v8, v{a}, v{b}\nv_lshlrev_b32 v{a}, 16, v8\nv_and_b32 v{b}, 0xffff0000, v8")
        k(f"v_mul_f32 v9, v{a}, v51\nv_mul_f32 v10, v{b}, v51\nv_fma_f32 v11, -v9, v50, v{a}\nv_fma_f32 v12, -v10, v50, v{b}")
        k(f"v_fma_f32 v9, v11, v51, v9\nv_fma_f32 v10, v12, v51, v10\nv_cvt_pk_bf16_f32 v{20+i}, v9, v10")
    k(f"s_mov_b32 s29, {ROWB}\nv_mul_lo_u32 v4, v3, s29")
    k("buffer_store_dwordx4 v[20:23], v4, s[20:23], s30 offen\nbuffer_store_dwordx4 v[24:27], v4, s[20:23], s30 offen offset:16\nbuffer_store_dword v28, v4, s[20:23], s30 offen offset:32")
    k.label("o_kernel_end")
    return k
```

```python
import json, sys
NAME = "interleave_layers__linear_kernel_hedgehog__spectral_fnet__prompt"
S, D, H, DH = 2048, 576, 32, 18
N3 = 3 * D
KA = dict(x=0, wqkv=8, wphi=16, wo=24, bx=32, sre=40, sim=48, hre=56, him=64, out=72, dbg=80, ws=88)
WS = {}
_off = 0
def wsalloc(name, nbytes):
    global _off
    WS[name] = _off
    _off += (nbytes + 0xFFFF) & ~0xFFFF
ROWB = D * 2
wsalloc("XN", S * ROWB); wsalloc("QKV", S * N3 * 2); wsalloc("O", S * ROWB)
wsalloc("X1", S * ROWB); wsalloc("X2", S * ROWB); wsalloc("X3", S * ROWB)
wsalloc("AT", D * S * 2); wsalloc("BT", D * S * 2); wsalloc("Y1", S * ROWB); wsalloc("Y2", S * ROWB)
wsalloc("WQKVT", N3 * D * 2); wsalloc("WOT", D * D * 2); wsalloc("WPHI32", 32 * 336 * 4)
KVCH = 8
KVP_PITCH = 36 * 20 * 4
wsalloc("KVP", 32 * KVCH * KVP_PITCH)

class K:
    def __init__(self, name, nvgpr=128, lds=0):
        self.name = name; self.l = []; self.nvgpr = nvgpr; self.lds = lds; self.uid = 0
    def __call__(self, s):
        for line in s.strip("\n").split("\n"):
            self.l.append("    " + line.strip())
    def label(self, l): self.l.append(l + ":")
    def newlabel(self, base="L"):
        self.uid += 1; return f"{self.name}_{base}{self.uid}"
    def text(self):
        nv = (self.nvgpr + 7) // 8 * 8
        acc = (self.nvgpr + 3) // 4 * 4
        return (f".text\n.globl {self.name}\n.p2align 8\n.type {self.name},@function\n{self.name}:\n" + "\n".join(self.l) +
                f"\n    s_endpgm\n.section .rodata,\"a\"\n.p2align 6\n.amdhsa_kernel {self.name}\n"
                f"  .amdhsa_next_free_vgpr {self.nvgpr}\n  .amdhsa_next_free_sgpr 102\n  .amdhsa_accum_offset {acc}\n"
                "  .amdhsa_group_segment_fixed_size 0\n  .amdhsa_kernarg_size 96\n  .amdhsa_user_sgpr_count 2\n"
                "  .amdhsa_user_sgpr_kernarg_segment_ptr 1\n  .amdhsa_system_sgpr_workgroup_id_x 1\n.end_amdhsa_kernel\n")

def srd(k, d, ptr_lo, off, size):
    if off:
        k(f"s_add_u32 s{d}, s{ptr_lo}, 0x{off:x}\ns_addc_u32 s{d+1}, s{ptr_lo+1}, 0")
    else:
        k(f"s_mov_b32 s{d}, s{ptr_lo}\ns_mov_b32 s{d+1}, s{ptr_lo+1}")
    k(f"s_mov_b32 s{d+2}, 0x{size:x}\ns_mov_b32 s{d+3}, 0x00020000")

def wave_sum(k, v):
    for sh in (1, 2, 4, 8):
        k(f"s_nop 1\nv_add_f32_dpp v{v}, v{v}, v{v} row_shr:{sh} row_mask:0xf bank_mask:0xf")
    k(f"s_nop 1\nv_add_f32_dpp v{v}, v{v}, v{v} row_bcast:15 row_mask:0xa bank_mask:0xf")
    k(f"s_nop 1\nv_add_f32_dpp v{v}, v{v}, v{v} row_bcast:31 row_mask:0xc bank_mask:0xf")

def gen_prep(k=None):
    merged = k is not None
    if not merged: k = K("prep_kernel", nvgpr=32)
    n1 = N3 * 72; n2 = D * 72; n3 = 32 * 324
    wg1 = (n1 + 255) // 256; wg2 = (n2 + 255) // 256; wg3 = (n3 + 255) // 256
    pgrid = wg1 + wg2 + wg3
    if not merged: k.grid = pgrid
    k("s_load_dwordx2 s[4:5], s[0:1], 8\ns_load_dwordx2 s[6:7], s[0:1], 24\ns_load_dwordx2 s[8:9], s[0:1], 16\ns_load_dwordx2 s[10:11], s[0:1], 88")
    k(f"s_cmp_ge_u32 s2, {pgrid}\ns_cbranch_scc1 prep_end\ns_waitcnt lgkmcnt(0)")
    k(f"s_cmp_ge_u32 s2, {wg1 + wg2}\ns_cbranch_scc1 prep_t3")
    k(f"s_cmp_ge_u32 s2, {wg1}\ns_cbranch_scc1 prep_t2")
    def transpose(src_lo, ncols, outoff, nthreads, wgbase):
        srd(k, 12, src_lo, 0, D * ncols * 2)
        srd(k, 16, 10, outoff, ncols * D * 2)
        k(f"s_sub_u32 s20, s2, {wgbase}\ns_lshl_b32 s20, s20, 8\nv_add_u32 v1, s20, v0")
        magic = (1 << 32) // ncols + 1
        k(f"s_mov_b32 s21, 0x{magic:x}\nv_mul_hi_u32 v2, v1, s21")
        k(f"s_mov_b32 s22, {ncols}\nv_mul_lo_u32 v3, v2, s22\nv_sub_u32 v3, v1, v3")
        k(f"v_cmp_gt_u32 vcc, 72, v2\ns_and_saveexec_b64 s[24:25], vcc\ns_cbranch_execz prep_end")
        k(f"s_mov_b32 s23, {ncols * 2 * 8}\nv_mul_lo_u32 v4, v2, s23\nv_lshl_add_u32 v4, v3, 1, v4")
        for j in range(8):
            k(f"buffer_load_ushort v{8+j}, v4, s[12:15], 0 offen offset:{0}" if j == 0 else
              f"v_add_u32 v4, {ncols*2}, v4\nbuffer_load_ushort v{8+j}, v4, s[12:15], 0 offen")
        k(f"s_mov_b32 s23, {ROWB}\nv_mul_lo_u32 v5, v3, s23\nv_lshl_add_u32 v5, v2, 4, v5")
        k("s_waitcnt vmcnt(0)")
        for j in range(4):
            k(f"v_lshl_or_b32 v{16+j}, v{9+2*j}, 16, v{8+2*j}")
        k("buffer_store_dwordx4 v[16:19], v5, s[16:19], 0 offen\ns_branch prep_end")
    transpose(4, N3, WS["WQKVT"], n1, 0)
    k.label("prep_t2")
    transpose(6, D, WS["WOT"], n2, wg1)
    k.label("prep_t3")
    srd(k, 12, 8, 0, 32 * 324 * 2)
    srd(k, 16, 10, WS["WPHI32"], 32 * 336 * 4)
    k(f"s_sub_u32 s20, s2, {wg1+wg2}\ns_lshl_b32 s20, s20, 8\nv_add_u32 v1, s20, v0")
    k(f"v_cmp_gt_u32 vcc, {n3}, v1\ns_and_saveexec_b64 s[24:25], vcc\ns_cbranch_execz prep_end")
    magic = (1 << 32) // 324 + 1
    k(f"s_mov_b32 s21, 0x{magic:x}\nv_mul_hi_u32 v2, v1, s21\ns_mov_b32 s22, 324\nv_mul_lo_u32 v3, v2, s22\nv_sub_u32 v3, v1, v3")
    k("v_lshlrev_b32 v4, 1, v1\nbuffer_load_ushort v8, v4, s[12:15], 0 offen")
    k("s_mov_b32 s22, 1344\nv_mul_lo_u32 v5, v2, s22\nv_lshl_add_u32 v5, v3, 2, v5")
    k("s_waitcnt vmcnt(0)\nv_lshlrev_b32 v8, 16, v8\nbuffer_store_dword v8, v5, s[16:19], 0 offen")
    k.label("prep_end")
    k.pgrid = pgrid
    return k

def gen_ln(name, src, comb=None, xdst=None, do_ln=True, with_prep=False):
    k = K(name, nvgpr=64)
    k.grid = S // 4
    if with_prep:
        k(f"s_cmp_lt_u32 s2, {S//4}\ns_cbranch_scc1 {name}_ln\ns_sub_u32 s2, s2, {S//4}")
        gen_prep(k)
        k(f"s_branch {name}_end")
        k.label(f"{name}_ln")
        k.grid = S // 4 + k.pgrid
    k("s_load_dwordx2 s[4:5], s[0:1], 0\ns_load_dwordx2 s[6:7], s[0:1], 88\ns_load_dwordx2 s[8:9], s[0:1], 72")
    k("v_lshrrev_b32 v1, 6, v0\nv_and_b32 v2, 63, v0\ns_nop 0\nv_readfirstlane_b32 s3, v1\ns_lshl_b32 s10, s2, 2\ns_add_u32 s10, s10, s3")
    k(f"s_cmp_ge_u32 s10, {S}\ns_cbranch_scc1 {name}_end\ns_waitcnt lgkmcnt(0)")
    if src == "in": srd(k, 12, 4, 0, S * ROWB)
    else: srd(k, 12, 6, WS[src], S * ROWB)
    srd(k, 16, 6, WS["XN"], S * ROWB)
    if comb:
        srd(k, 20, 6, WS[comb[0]], S * ROWB); srd(k, 24, 6, WS[comb[1]], S * ROWB)
        if xdst == "out": srd(k, 28, 8, 0, S * ROWB)
        else: srd(k, 28, 6, WS[xdst], S * ROWB)
    k(f"s_mul_i32 s11, s10, {ROWB}")
    k("v_lshlrev_b32 v3, 4, v2\nv_cmp_gt_u32 s[32:33], 8, v2")
    for i in range(12, 20): k(f"v_mov_b32 v{i}, 0")
    def load8(srdb, regs_a, regs_b):
        k(f"buffer_load_dwordx4 v[{regs_a}:{regs_a+3}], v3, s[{srdb}:{srdb+3}], s11 offen")
        k(f"s_mov_b64 exec, s[32:33]\nbuffer_load_dwordx4 v[{regs_b}:{regs_b+3}], v3, s[{srdb}:{srdb+3}], s11 offen offset:1024\ns_mov_b64 exec, -1")
    def unpack(src4, dst8):
        for i in range(4):
            k(f"v_lshlrev_b32 v{dst8+2*i}, 16, v{src4+i}\nv_and_b32 v{dst8+2*i+1}, 0xffff0000, v{src4+i}")
    load8(12, 4, 12)
    if comb:
        for i in range(36, 44): k(f"v_mov_b32 v{i}, 0")
        load8(20, 8, 16); load8(24, 36, 40)
        k("s_waitcnt vmcnt(0)")
        def combine(xr, y1r, y2r, dst8):
            for i in range(4):
                k(f"v_lshlrev_b32 v44, 16, v{y1r+i}\nv_and_b32 v45, 0xffff0000, v{y1r+i}\nv_lshlrev_b32 v46, 16, v{y2r+i}\nv_and_b32 v47, 0xffff0000, v{y2r+i}")
                k("v_sub_f32 v44, v44, v46\nv_sub_f32 v45, v45, v47\nv_cvt_pk_bf16_f32 v44, v44, v45")
                k(f"v_lshlrev_b32 v45, 16, v44\nv_and_b32 v46, 0xffff0000, v44\nv_lshlrev_b32 v47, 16, v{xr+i}\nv_and_b32 v48, 0xffff0000, v{xr+i}")
                k(f"v_add_f32 v45, v45, v47\nv_add_f32 v46, v46, v48\nv_cvt_pk_bf16_f32 v{xr+i}, v45, v46")
        combine(4, 8, 36, 20); combine(12, 16, 40, 28)
        k("buffer_store_dwordx4 v[4:7], v3, s[28:31], s11 offen")
        k("s_mov_b64 exec, s[32:33]\nbuffer_store_dwordx4 v[12:15], v3, s[28:31], s11 offen offset:1024\ns_mov_b64 exec, -1")
        if not do_ln:
            k.label(f"{name}_end"); return k
    else:
        k("s_waitcnt vmcnt(0)")
    unpack(4, 20); unpack(12, 28)
    k("v_add_f32 v36, v20, v21")
    for i in range(22, 36): k(f"v_add_f32 v36, v36, v{i}")
    wave_sum(k, 36)
    k("s_nop 0\nv_readlane_b32 s34, v36, 63\ns_nop 1\nv_mov_b32 v37, s34\nv_mul_f32 v37, 0x3ae38e39, v37")
    k("v_sub_f32 v38, v20, v37\nv_mul_f32 v36, v38, v38")
    for i in range(21, 28): k(f"v_sub_f32 v38, v{i}, v37\nv_fmac_f32 v36, v38, v38")
    k("s_mov_b64 exec, s[32:33]")
    for i in range(28, 36): k(f"v_sub_f32 v38, v{i}, v37\nv_fmac_f32 v36, v38, v38")
    k("s_mov_b64 exec, -1")
    wave_sum(k, 36)
    k("s_nop 0\nv_readlane_b32 s34, v36, 63\ns_nop 1\nv_mov_b32 v38, s34\nv_mul_f32 v38, 0x3ae38e39, v38")
    k("v_cvt_pk_bf16_f32 v39, v37, v38\nv_lshlrev_b32 v37, 16, v39\nv_and_b32 v38, 0xffff0000, v39")
    k("v_add_f32 v38, 0x3727c5ac, v38\nv_cvt_pk_bf16_f32 v39, v38, v38\nv_lshlrev_b32 v38, 16, v39")
    k("v_sqrt_f32 v38, v38\ns_nop 0\nv_cvt_pk_bf16_f32 v39, v38, v38\nv_lshlrev_b32 v38, 16, v39")
    k("v_rcp_f32 v39, v38\ns_nop 0")
    def norm(x8, dst4):
        for i in range(4):
            a, b = x8 + 2 * i, x8 + 2 * i + 1
            k(f"v_sub_f32 v40, v{a}, v37\nv_sub_f32 v41, v{b}, v37\nv_cvt_pk_bf16_f32 v42, v40, v41\nv_lshlrev_b32 v40, 16, v42\nv_and_b32 v41, 0xffff0000, v42")
            k("v_mul_f32 v42, v40, v39\nv_mul_f32 v43, v41, v39\nv_fma_f32 v44, -v42, v38, v40\nv_fma_f32 v45, -v43, v38, v41")
            k(f"v_fma_f32 v42, v44, v39, v42\nv_fma_f32 v43, v45, v39, v43\nv_cvt_pk_bf16_f32 v{dst4+i}, v42, v43")
    norm(20, 4); norm(28, 12)
    k("buffer_store_dwordx4 v[4:7], v3, s[16:19], s11 offen")
    k("s_mov_b64 exec, s[32:33]\nbuffer_store_dwordx4 v[12:15], v3, s[16:19], s11 offen offset:1024\ns_mov_b64 exec, -1")
    k.label(f"{name}_end")
    return k

def emit(kernels, launches, path):
    hdr = open(f"cdna_kernels/{NAME}.s.ref").read().split("; Override launch")[0]
    out = hdr
    for nm in launches:
        kk = kernels[nm]
        blk = getattr(kk, "block", 256)
        out += f"; @launch kernel={nm} grid=({kk.grid},1,1) block=({blk},1,1) lds={kk.lds}\n"
    out += '.amdgcn_target "amdgcn-amd-amdhsa--gfx950"\n'
    for kk in kernels.values(): out += kk.text()
    open(path, "w").write(out)
```

```python
from g import *

def cdiv(a, b): return (a + b - 1) // b

DBG = {}
def gen_gemm(name, *, BP, BQ, WP, WQ, NS, Kdim, Pdesc, Qdesc, tilemap, grid, epi, out_desc, res_desc=None):
    NS = DBG.get('NS', NS)
    BPw = cdiv(BP, WP); BQw = BQ // WQ
    nPb = cdiv(BPw, 16); nQb = cdiv(BQw, 16)
    gP = cdiv(BP, 8); gQ = cdiv(BQ, 8)
    slP = cdiv(gP, 4); slQ = cdiv(gQ, 4)
    stage = (slP + slQ) * 4096
    regQ = slP * 4096
    KT = Kdim // 64
    L = slP + slQ
    lds = NS * stage
    accb = 16
    nacc = nPb * nQb * 4
    fr0 = accb + nacc
    nfr = (nPb + nQb) * 4
    nvgpr = fr0 + 2 * nfr + 8
    k = K(name, nvgpr=max(nvgpr, 32), lds=lds)
    k.grid = grid
    end = f"{name}_end"
    k(f"s_cmp_ge_u32 s2, {grid}\ns_cbranch_scc1 {end}")
    def ptr_slot(d): return KA[d["ptr"]]
    k(f"s_load_dwordx2 s[4:5], s[0:1], {ptr_slot(Pdesc)}\ns_load_dwordx2 s[6:7], s[0:1], {ptr_slot(Qdesc)}")
    k(f"s_load_dwordx2 s[64:65], s[0:1], {ptr_slot(out_desc)}")
    if res_desc: k(f"s_load_dwordx2 s[66:67], s[0:1], {ptr_slot(res_desc)}")
    k("v_and_b32 v1, 63, v0\nv_lshrrev_b32 v4, 6, v0\ns_nop 0\nv_readfirstlane_b32 s24, v4\ns_lshl_b32 s25, s24, 10")
    k("s_waitcnt lgkmcnt(0)")
    tilemap(k)
    srd(k, 8, 4, Pdesc["off"], Pdesc["ld"] * Pdesc["nrows"])
    srd(k, 12, 6, Qdesc["off"], Qdesc["ld"] * Qdesc["nrows"])
    srd(k, 16, 64, out_desc["off"], out_desc["bytes"])
    if res_desc: srd(k, 20, 66, res_desc["off"], res_desc["bytes"])
    krot = DBG.get('krot', 0)
    if krot:
        k(f"s_mul_i32 s62, s2, {krot}\ns_and_b32 s62, s62, {KT-1}" if (KT & (KT-1)) == 0 else f"s_mul_i32 s62, s2, {krot}\ns_mul_hi_u32 s63, s62, 0x{(1<<32)//KT+1:x}\ns_mul_i32 s63, s63, {KT}\ns_sub_u32 s62, s62, s63")
        k(f"s_mov_b32 s61, {128 - Kdim*2}\ns_mov_b32 s60, 128\ns_sub_u32 s63, {KT}, s62\ns_lshl_b32 s28, s62, 7\ns_add_u32 s8, s8, s28\ns_addc_u32 s9, s9, 0\ns_add_u32 s12, s12, s28\ns_addc_u32 s13, s13, 0")
    k("v_lshrrev_b32 v4, 3, v1\nv_and_b32 v5, 7, v1\nv_xor_b32 v5, v5, v4\nv_lshlrev_b32 v5, 4, v5")
    k(f"s_mov_b32 s28, {Pdesc['ld']}\nv_mul_lo_u32 v2, v4, s28\nv_add_u32 v2, v2, v5")
    k(f"s_mov_b32 s28, {Qdesc['ld']}\nv_mul_lo_u32 v3, v4, s28\nv_add_u32 v3, v3, v5")
    def soffs(base_s, nsl, ng, tile_s, B, ld):
        for j in range(nsl):
            k(f"s_add_u32 s28, s24, {4*j}\ns_lshl_b32 s29, s28, 3\ns_mul_i32 s30, s{tile_s}, {B}\ns_add_u32 s29, s29, s30\ns_mul_i32 s29, s29, {ld}")
            if 4 * j + 3 >= ng:
                k(f"s_cmp_lt_u32 s28, {ng}\ns_cselect_b32 s{base_s+j}, s29, 0x7f000000")
            else:
                k(f"s_mov_b32 s{base_s+j}, s29")
    soffs(32, slP, gP, 26, BP, Pdesc["ld"]); soffs(48, slQ, gQ, 27, BQ, Qdesc["ld"])
    k(f"s_and_b32 s28, s24, {WP-1}\ns_lshr_b32 s29, s24, {WP.bit_length()-1}")
    k(f"s_mul_i32 s28, s28, {BPw*128}\ns_mul_i32 s29, s29, {BQw*128}")
    k("v_and_b32 v4, 15, v1\nv_lshlrev_b32 v4, 7, v4\nv_lshrrev_b32 v5, 4, v1\nv_and_b32 v6, 7, v1\nv_xor_b32 v5, v5, v6\nv_lshl_add_u32 v4, v5, 4, v4")
    k("v_add_u32 v6, s28, v4\nv_xor_b32 v7, 64, v6\nv_add_u32 v8, 0x10000, v6\nv_add_u32 v9, 0x10000, v7")
    k("v_add_u32 v10, s29, v4\nv_xor_b32 v11, 64, v10\nv_add_u32 v12, 0x10000, v10\nv_add_u32 v13, 0x10000, v11")
    for i in range(nacc): k(f"v_mov_b32 v{accb+i}, 0")
    def issue_list(kt):
        st = kt % NS
        out = []
        for j in range(slP):
            out.append(f"s_add_u32 m0, s25, {st*stage + j*4096}\ns_nop 0\nbuffer_load_dwordx4 v2, s[8:11], s{32+j} offen lds")
        for j in range(slQ):
            out.append(f"s_add_u32 m0, s25, {st*stage + regQ + j*4096}\ns_nop 0\nbuffer_load_dwordx4 v3, s[12:15], s{48+j} offen lds")
        if krot:
            out.append(f"s_sub_u32 s63, s63, 1\ns_cmp_eq_u32 s63, 0\ns_cselect_b32 s28, s61, s60\ns_ashr_i32 s29, s28, 31\ns_add_u32 s8, s8, s28\ns_addc_u32 s9, s9, s29\ns_add_u32 s12, s12, s28\ns_addc_u32 s13, s13, s29")
        else:
            out.append("s_add_u32 s8, s8, 128\ns_addc_u32 s9, s9, 0\ns_add_u32 s12, s12, 128\ns_addc_u32 s13, s13, 0")
        return out
    def issue(kt):
        for x in issue_list(kt): k(x)
    def rd(dst, areg, off):
        hi = off >= 0x10000
        k(f"ds_read_b128 v[{dst}:{dst+3}], v{areg + (2 if hi else 0)} offset:{off - (0x10000 if hi else 0)}")
    def reads(kt, kk):
        st = kt % NS
        fb = fr0 + kk * nfr
        for pb in range(nPb): rd(fb + 4 * pb, 6 + kk, st * stage + pb * 2048)
        for qb in range(nQb): rd(fb + 4 * (nPb + qb), 10 + kk, st * stage + regQ + qb * 2048)
    def mfmas(kk, dma, per):
        fb = fr0 + kk * nfr
        cnt = 0
        for pb in range(nPb):
            for qb in range(nQb):
                a = accb + 4 * (pb * nQb + qb)
                if cnt % per == 0 and dma: k(dma.pop(0))
                k(f"v_mfma_f32_16x16x32_bf16 v[{a}:{a+3}], v[{fb+4*pb}:{fb+4*pb+3}], v[{fb+4*(nPb+qb)}:{fb+4*(nPb+qb)+3}], v[{a}:{a+3}]")
                cnt += 1
    for kt in range(min(NS, KT)): issue(kt)
    k(f"s_waitcnt vmcnt({L * (min(NS, KT) - 1)})\ns_barrier")
    reads(0, 0)
    nm = nPb * nQb
    for kt in range(KT):
        reads(kt, 1)
        k(f"s_waitcnt lgkmcnt({nPb+nQb})")
        mfmas(0, [], 1)
        k("s_waitcnt lgkmcnt(0)")
        dma = []
        if kt + 1 < KT:
            inflight = min(NS - 1, KT - 1 - kt)
            k(f"s_waitcnt vmcnt({L * (inflight - 1)})\ns_barrier")
            reads(kt + 1, 0)
            if kt + NS < KT: dma = issue_list(kt + NS)
        per = max(1, nm // max(1, len(dma)))
        mfmas(1, dma, per)
        for x in dma: k(x)
    k("s_nop 7\ns_nop 7")
    ldo = out_desc["ld"]
    k(f"s_mul_i32 s28, s27, {BQ}\ns_lshr_b32 s29, s24, {WP.bit_length()-1}\ns_mul_i32 s29, s29, {BQw}\ns_add_u32 s28, s28, s29")
    k(f"s_mul_i32 s29, s26, {BP}\ns_and_b32 s30, s24, {WP-1}\ns_mul_i32 s30, s30, {BPw}\ns_add_u32 s29, s29, s30\ns_lshl_b32 s29, s29, 1")
    k(f"v_and_b32 v4, 15, v1\nv_add_u32 v4, s28, v4\ns_mov_b32 s30, {ldo}\nv_mul_lo_u32 v4, v4, s30\nv_lshrrev_b32 v5, 4, v1\nv_lshlrev_b32 v5, 3, v5\nv_add_u32 v4, v4, v5\nv_add_u32 v4, s29, v4")
    t0 = fr0
    for qb in range(nQb):
        for pb in range(nPb):
            a = accb + 4 * (pb * nQb + qb)
            nval = min(16, BP - pb * 16) if WP == 1 else 16
            masked = nval < 16
            if masked: k(f"s_mov_b64 exec, 0x{(1 << (nval // 4 * 16)) - 1:x}")
            k(f"s_mov_b32 s31, {qb*16*ldo + pb*32}")
            k(f"v_cvt_pk_bf16_f32 v{t0}, v{a}, v{a+1}\nv_cvt_pk_bf16_f32 v{t0+1}, v{a+2}, v{a+3}")
            if epi == "res":
                k(f"buffer_load_dwordx2 v[{t0+2}:{t0+3}], v4, s[20:23], s31 offen\ns_waitcnt vmcnt(0)")
                for h in range(2):
                    k(f"v_lshlrev_b32 v{t0+4}, 16, v{t0+h}\nv_and_b32 v{t0+5}, 0xffff0000, v{t0+h}\nv_lshlrev_b32 v{t0+6}, 16, v{t0+2+h}\nv_and_b32 v{t0+7}, 0xffff0000, v{t0+2+h}")
                    k(f"v_add_f32 v{t0+4}, v{t0+4}, v{t0+6}\nv_add_f32 v{t0+5}, v{t0+5}, v{t0+7}\nv_cvt_pk_bf16_f32 v{t0+h}, v{t0+4}, v{t0+5}")
            k(f"buffer_store_dwordx2 v[{t0}:{t0+1}], v4, s[16:19], s31 offen")
            if masked: k("s_mov_b64 exec, -1")
    k.label(end)
    return k

def divmod_s(k, src, d, q, r):
    magic = (1 << 32) // d + 1
    k(f"s_mul_hi_u32 s{q}, s{src}, 0x{magic:x}\ns_mul_i32 s{r}, s{q}, {d}\ns_sub_u32 s{r}, s{src}, s{r}")

def gen_g1():
    def tm(k):
        k("s_and_b32 s27, s2, 7\ns_lshr_b32 s26, s2, 3")
    return gen_gemm("g1_kernel", BP=64, BQ=256, WP=1, WQ=4, NS=3, Kdim=D,
                    Pdesc=dict(ptr="ws", off=WS["WQKVT"], ld=ROWB, nrows=N3),
                    Qdesc=dict(ptr="ws", off=WS["XN"], ld=ROWB, nrows=S),
                    tilemap=tm, grid=27 * 8, epi="plain",
                    out_desc=dict(ptr="ws", off=WS["QKV"], ld=N3 * 2, bytes=S * N3 * 2))

def gen_g2(name, res, dst):
    def tm(k):
        k("s_and_b32 s28, s2, 7\ns_lshr_b32 s29, s2, 3")
        divmod_s(k, 29, 6, 30, 26)
        k("s_lshl_b32 s27, s28, 2\ns_add_u32 s27, s27, s30")
    rd = dict(ptr="x", off=0, bytes=S * ROWB) if res == "in" else dict(ptr="ws", off=WS[res], bytes=S * ROWB)
    return gen_gemm(name, BP=96, BQ=64, WP=2, WQ=2, NS=4, Kdim=D,
                    Pdesc=dict(ptr="ws", off=WS["WOT"], ld=ROWB, nrows=D),
                    Qdesc=dict(ptr="ws", off=WS["O"], ld=ROWB, nrows=S),
                    tilemap=tm, grid=192, epi="res",
                    out_desc=dict(ptr="ws", off=WS[dst], ld=ROWB, bytes=S * ROWB), res_desc=rd)

def gen_g3():
    def tm(k):
        k("s_and_b32 s28, s2, 7\ns_lshr_b32 s29, s2, 3")
        divmod_s(k, 29, 12, 30, 31)
        k("s_lshl_b32 s26, s28, 1\ns_add_u32 s26, s26, s30")
        divmod_s(k, 31, 6, 30, 27)
        k(f"s_load_dwordx2 s[6:7], s[0:1], {KA['him']}\ns_cmp_eq_u32 s30, 0\ns_cbranch_scc1 g3_kernel_re\ns_waitcnt lgkmcnt(0)")
        k(f"s_add_u32 s64, s64, 0x{WS['BT']-WS['AT']:x}\ns_addc_u32 s65, s65, 0\ns_branch g3_kernel_go")
        k.label("g3_kernel_re")
        k(f"s_waitcnt lgkmcnt(0)\ns_load_dwordx2 s[6:7], s[0:1], {KA['hre']}\ns_waitcnt lgkmcnt(0)")
        k.label("g3_kernel_go")
    return gen_gemm("g3_kernel", BP=128, BQ=96, WP=2, WQ=2, NS=4, Kdim=D,
                    Pdesc=dict(ptr="ws", off=WS["XN"], ld=ROWB, nrows=S),
                    Qdesc=dict(ptr="hre", off=0, ld=ROWB, nrows=D),
                    tilemap=tm, grid=192, epi="plain",
                    out_desc=dict(ptr="ws", off=WS["AT"], ld=S * 2, bytes=D * S * 2))

def gen_g4():
    def tm(k):
        k("s_and_b32 s28, s2, 7\ns_lshr_b32 s29, s2, 3\ns_and_b32 s26, s29, 7\ns_lshr_b32 s29, s29, 3\ns_lshl_b32 s28, s28, 2\ns_add_u32 s28, s28, s29")
        k("s_and_b32 s27, s28, 15\ns_lshr_b32 s30, s28, 4")
        k(f"s_load_dwordx2 s[6:7], s[0:1], {KA['sim']}\ns_cmp_eq_u32 s30, 0\ns_cbranch_scc1 g4_kernel_re\ns_waitcnt lgkmcnt(0)")
        k(f"s_add_u32 s4, s4, 0x{WS['BT']-WS['AT']:x}\ns_addc_u32 s5, s5, 0\ns_add_u32 s64, s64, 0x{WS['Y2']-WS['Y1']:x}\ns_addc_u32 s65, s65, 0\ns_branch g4_kernel_go")
        k.label("g4_kernel_re")
        k(f"s_waitcnt lgkmcnt(0)\ns_load_dwordx2 s[6:7], s[0:1], {KA['sre']}\ns_waitcnt lgkmcnt(0)")
        k.label("g4_kernel_go")
    return gen_gemm("g4_kernel", BP=72, BQ=128, WP=1, WQ=4, NS=4, Kdim=S,
                    Pdesc=dict(ptr="ws", off=WS["AT"], ld=S * 2, nrows=D),
                    Qdesc=dict(ptr="sre", off=0, ld=S * 2, nrows=S),
                    tilemap=tm, grid=256, epi="plain",
                    out_desc=dict(ptr="ws", off=WS["Y1"], ld=ROWB, bytes=S * ROWB))
```

```python
import json, sys
from g import *
from gemm import *
from attn2 import *
ks = {}
for kk in (gen_ln("ln1_kernel", "in", with_prep=True), gen_g1(), gen_kv(), gen_o(), gen_g2("g2a_kernel", "in", "X1"),
           gen_ln("ln2_kernel", "X1"), gen_g3(), gen_g4(),
           gen_ln("ln3_kernel", "X1", comb=("Y1", "Y2"), xdst="X2"), gen_g2("g2b_kernel", "X2", "X3"),
           gen_ln("ln4_kernel", "X3"), gen_ln("fin_kernel", "X3", comb=("Y1", "Y2"), xdst="out", do_ln=False)):
    ks[kk.name] = kk
L = ["ln1_kernel", "g1_kernel", "kv_kernel", "o_kernel", "g2a_kernel", "ln2_kernel", "g3_kernel", "g4_kernel",
     "ln3_kernel", "g1_kernel", "kv_kernel", "o_kernel", "g2b_kernel", "ln4_kernel", "g3_kernel", "g4_kernel", "fin_kernel"]
out = sys.argv[1] if len(sys.argv) > 1 else "b3.s"
emit(ks, L, out)
cfg = {"ws": {"X1": {"off": WS["X1"], "shape": [S, D], "ref": "x1"},
              "X2": {"off": WS["X2"], "shape": [S, D], "ref": "x2"},
              "X3": {"off": WS["X3"], "shape": [S, D], "ref": "x3"},
              "AT": {"off": WS["AT"], "shape": [D, S], "ref": "a4", "refshape": [S, D], "T": [1, 0]},
              "Y1": {"off": WS["Y1"], "shape": [S, D], "ref": "y14"},
              "Y2": {"off": WS["Y2"], "shape": [S, D], "ref": "y24"}}, "outref": "x4"}
json.dump(cfg, open("b3.json", "w"))
```
